```python
import torch

def _softmax(x, axis=-1):
    return torch.softmax(x, dim=axis)
def _gelu(x):
    return torch.nn.functional.gelu(x, approximate="tanh")
def _silu(x):
    return torch.nn.functional.silu(x)
def _sigmoid(x):
    return torch.sigmoid(x)
def _layernorm(x, axis=-1, eps=1e-5):
    m = x.mean(dim=axis, keepdim=True)
    v = x.var(dim=axis, keepdim=True, unbiased=False)
    return (x - m) / torch.sqrt(v + eps)
def _scatter_add(tgt, idx, src, axis=0):
    return tgt.clone().index_add_(axis, idx, src)
def _segment_sum(src, seg, n):
    out = torch.zeros((n,) + src.shape[1:], dtype=src.dtype)
    return out.index_add_(0, seg, src)
def _pad(x, pw):
    flat = tuple(v for pair in reversed(pw) for v in pair)
    return torch.nn.functional.pad(x, flat)

kernel_name = 'interleave_layers__softmax_full_mha__mixer_token_mlp__prompt'

def setup_inputs():

    _w = (lambda a: (lambda t: t.to(torch.bfloat16) if t.is_floating_point() else t)(torch.as_tensor(a)))
    def _A_setup():
        B, S, D = 1, 2048, 640
        return {
            "x": _w((lambda *s: torch.randn(*s, dtype=torch.bfloat16) * 0.05)(B, S, D)),
            "wqkv": _w((lambda *s: torch.randn(*s, dtype=torch.bfloat16) * 0.05)(D, 3 * D)),
            "wo": _w((lambda *s: torch.randn(*s, dtype=torch.bfloat16) * 0.05)(D, D)),
        }
    _A_in = _A_setup()

    def _B_setup():
        B, S, D, F = 1, 2048, 640, 1536
        return {
            "x": _w((lambda *s: torch.randn(*s, dtype=torch.bfloat16) * 0.05)(B, S, D)),
            "w1": _w((lambda *s: torch.randn(*s, dtype=torch.bfloat16) * 0.8)(S, F) * (S ** -0.5)),
            "b1": _w((lambda *s: torch.randn(*s, dtype=torch.bfloat16) * 12.8)(F) * 0.02),
            "w2": _w((lambda *s: torch.randn(*s, dtype=torch.bfloat16) * 0.4)(F, S) * (F ** -0.5)),
            "b2": _w((lambda *s: torch.randn(*s, dtype=torch.bfloat16) * 6.4)(S) * 0.02),
        }
    _B_in = _B_setup()

    return {
        "A_x": _A_in["x"],
        "A_wqkv": _A_in["wqkv"],
        "A_wo": _A_in["wo"],
        "B_x": _B_in["x"],
        "B_w1": _B_in["w1"],
        "B_b1": _B_in["b1"],
        "B_w2": _B_in["w2"],
        "B_b2": _B_in["b2"],
    }

def reference(A_x, A_wqkv, A_wo, B_x, B_w1, B_b1, B_w2, B_b2):
    def _A_ref(x, wqkv, wo):
        B, S, D = x.shape
        H = 32; Dh = D // H
        qkv = (lambda x, *d: x.permute(*d))((x @ wqkv).reshape(B, S, 3, H, Dh), 2, 0, 3, 1, 4)
        q, k, v = qkv[0], qkv[1], qkv[2]
        scale = Dh ** -0.5
        scores = torch.einsum("bhqd,bhkd->bhqk", q, k) * scale
        p = _softmax(scores, axis=-1)
        o = torch.einsum("bhqk,bhkd->bhqd", p, v)
        return (lambda x, *d: x.permute(*d))(o, 0, 2, 1, 3).reshape(B, S, D) @ wo

    def _B_ref(x, w1, b1, w2, b2):
        B, S, D = x.shape
        h = _layernorm(x, axis=-1)
        u = torch.einsum("bsd,sf->bdf", h, w1) + b1
        u = _gelu(u)
        y = torch.einsum("bdf,fs->bds", u, w2) + b2
        return (lambda x, *d: x.permute(*d))(y, 0, 2, 1)

    x = A_x
    x = x + _A_ref(_layernorm(x, axis=-1), A_wqkv, A_wo)
    x = x + _B_ref(_layernorm(x, axis=-1), B_w1, B_b1, B_w2, B_b2)
    x = x + _A_ref(_layernorm(x, axis=-1), A_wqkv, A_wo)
    x = x + _B_ref(_layernorm(x, axis=-1), B_w1, B_b1, B_w2, B_b2)
    return x
```

```python
S, D, H, DH, F = 2048, 640, 32, 20, 1536
QBUF  = 0x000000
KVBUF = 0x280000
OBUF  = 0x780000
X1BUF = 0xA00000
UBUF  = 0xC80000
X2BUF = 0xE60000
STATS = 0x10E0000
WS_USED = 0x10E4000
XBYTES = S*D*2

class Asm:
    def __init__(self):
        self.lines = []
        self.uid = 0
    def __call__(self, s):
        for l in s.split('\n'):
            l = l.strip()
            if not l:
                continue
            if l.endswith(':') or l.startswith('.'):
                self.lines.append(l)
            else:
                self.lines.append('    ' + l)
    def label(self, base):
        self.uid += 1
        return f"L_{base}_{self.uid}"
    def text(self):
        return '\n'.join(self.lines) + '\n'

def vr(a, n=1):
    return f"v{a}" if n == 1 else f"v[{a}:{a+n-1}]"
def sr(a, n=1):
    return f"s{a}" if n == 1 else f"s[{a}:{a+n-1}]"

def srd(A, d, base, nbytes):
    A(f"s_mov_b32 s{d}, s{base}")
    A(f"s_mov_b32 s{d+1}, s{base+1}")
    A(f"s_mov_b32 s{d+2}, {nbytes}")
    A(f"s_mov_b32 s{d+3}, 0x00020000")

def srd_off(A, d, base, off, nbytes):
    A(f"s_add_u32 s{d}, s{base}, {off}")
    A(f"s_addc_u32 s{d+1}, s{base+1}, 0")
    A(f"s_mov_b32 s{d+2}, {nbytes}")
    A(f"s_mov_b32 s{d+3}, 0x00020000")

def entry(A, name):
    A(f".globl {name}")
    A(".p2align 8")
    A(f".type {name},@function")
    A(f"{name}:")

def descriptor(name, vgpr, sgpr=102, accum=None):
    if accum is None:
        accum = (vgpr + 3)//4*4
    return f""".p2align 6
.amdhsa_kernel {name}
  .amdhsa_next_free_vgpr {vgpr}
  .amdhsa_next_free_sgpr {sgpr}
  .amdhsa_accum_offset {accum}
  .amdhsa_group_segment_fixed_size 0
  .amdhsa_kernarg_size 88
  .amdhsa_user_sgpr_count 2
  .amdhsa_user_sgpr_kernarg_segment_ptr 1
  .amdhsa_system_sgpr_workgroup_id_x 1
.end_amdhsa_kernel
"""
import struct
def f2u(x):
    return struct.unpack('<I', struct.pack('<f', x))[0]
def fhex(x):
    return f"0x{f2u(x):08x}"
```

```python
from common import *

LDS_ATTN = 163840
TILE = 2560

def gen_attn(A):
    entry(A, "attn_kernel")
    A("s_cmp_ge_u32 s2, 256")
    A("s_cbranch_scc1 attn_exit")
    A("s_load_dwordx2 s[8:9], s[0:1], 80")
    vKA, vKB, vV, vL16, vQB = 2, 3, 4, 5, 6
    t0, t1, t2 = 7, 8, 9
    T = 10
    KB = 14
    KA = 16
    V0, V1 = 20, 24
    QA = (28, 32)
    QB = (36, 38)
    P = (40, 48)
    SH = (56, 72)
    Sx = (88, 104)
    O = (120, 136)
    NV = 152
    A("v_lshrrev_b32 v2, 6, v0")
    A("v_and_b32 v1, 63, v0")
    A("s_and_b32 s25, s2, 31")
    A("v_readfirstlane_b32 s24, v2")
    A("s_lshr_b32 s26, s2, 5")
    A("s_mov_b32 s30, 0")
    A("s_mov_b32 s32, 0x000fffff")
    A("s_mov_b32 s33, 0x000fffff")
    A("s_lshr_b32 s27, s24, 2")
    A("s_and_b32 s28, s24, 3")
    A(f"v_lshlrev_b32 v{vL16}, 4, v1")
    A(f"v_lshlrev_b32 v{vQB}, 3, v1")
    A(f"v_mov_b32 v{t0}, 0x40000000")
    A("v_cmp_gt_u32 vcc, 32, v1")
    A(f"v_and_b32 v{t1}, 31, v1")
    A(f"v_lshrrev_b32 v{t2}, 5, v1")
    A(f"v_cndmask_b32 v{vQB}, v{t0}, v{vQB}, vcc")
    A("s_waitcnt lgkmcnt(0)")
    srd(A, 12, 8, WS_USED)
    A("s_lshl_b32 s34, s25, 6")
    A("s_lshl_b32 s35, s26, 3")
    A("s_add_u32 s34, s34, s35")
    A("s_lshl_b32 s35, s28, 1")
    A("s_add_u32 s34, s34, s35")
    A("s_mul_i32 s40, s34, 1280")
    A("s_mul_i32 s41, s27, 81920")
    A("attn_restart:")
    for tt in range(2):
        A(f"buffer_load_dwordx4 {vr(QA[tt],4)}, v{vL16}, s[12:15], s40 offen offset:{tt*1280}")
        A(f"buffer_load_dwordx2 {vr(QB[tt],2)}, v{vQB}, s[12:15], s40 offen offset:{tt*1280+1024}")
    A("s_lshl_b32 s35, s28, 10")
    A("s_add_u32 s35, s35, s41")
    A(f"s_mul_i32 s36, s25, {64*TILE}")
    A("s_add_u32 s36, s36, s35")
    A(f"s_add_u32 s36, s36, {KVBUF}")
    for j in range(20):
        A(f"s_add_u32 m0, s35, {j*4096}")
        A(f"s_add_u32 s37, s36, {j*4096}")
        A(f"buffer_load_dwordx4 v{vL16}, s[12:15], s37 offen lds")
    A(f"v_mov_b32 v{vKA}, v{vL16}")
    A(f"v_lshlrev_b32 v{vKB}, 3, v{t1}")
    A(f"v_add_u32 v{vKB}, 1024, v{vKB}")
    A(f"v_mul_u32_u24 v{vV}, 320, v{t2}")
    A(f"v_lshl_add_u32 v{vV}, v{t1}, 4, v{vV}")
    A(f"v_add_u32 v{vV}, 1280, v{vV}")
    A(f"v_add_u32 v{vV}, s41, v{vV}")
    for r in range(8):
        A(f"v_mov_b32 v{V0+r}, 0x3f803f80")
        A(f"v_mov_b32 v{P[1]+r}, 0")
    for r in range(32):
        A(f"v_mov_b32 v{O[0]+r}, 0")
    A(f"v_mov_b32 v{T+2}, 0")
    A(f"v_mov_b32 v{T+3}, 0")
    A(f"v_mov_b32 v{SH[0]}, 0xff800000")
    A(f"v_mov_b32 v{SH[1]}, 0xff800000")
    A("s_waitcnt vmcnt(17)")
    A("s_mov_b32 s29, 1")
    A("s_cmp_eq_u32 s30, 0")
    A("s_cbranch_scc1 attn_maxgo")
    A("s_waitcnt vmcnt(0)")
    A("s_mov_b32 s29, 64")
    A("attn_maxgo:")
    A("s_barrier")
    A("attn_maxloop:")
    A(f"ds_read_b64 {vr(KB,2)}, v{vKB}")
    A(f"ds_read_b128 {vr(KA,4)}, v{vKA}")
    A(f"v_add_u32 v{vKB}, {TILE}, v{vKB}")
    A(f"v_add_u32 v{vKA}, {TILE}, v{vKA}")
    A("s_waitcnt lgkmcnt(0)")
    for tt in range(2):
        A(f"v_mfma_f32_32x32x8_bf16 {vr(Sx[tt],16)}, {vr(KB,2)}, {vr(QB[tt],2)}, 0")
    A("s_nop 9")
    for tt in range(2):
        A(f"v_mfma_f32_32x32x16_bf16 {vr(Sx[tt],16)}, {vr(KA,4)}, {vr(QA[tt],4)}, {vr(Sx[tt],16)}")
    A("s_nop 11")
    for tt in range(2):
        for r in range(0, 16, 2):
            A(f"v_max3_f32 v{SH[tt]}, v{Sx[tt]+r}, v{Sx[tt]+r+1}, v{SH[tt]}")
    A("s_sub_u32 s29, s29, 1")
    A("s_cmp_lg_u32 s29, 0")
    A("s_cbranch_scc1 attn_maxloop")
    A(f"v_add_u32 v{vKA}, s41, v{vL16}")
    A(f"v_lshlrev_b32 v{vKB}, 3, v{t1}")
    A(f"v_add_u32 v{vKB}, 1024, v{vKB}")
    A(f"v_add_u32 v{vKB}, s41, v{vKB}")
    A(f"ds_read_b64 {vr(KB,2)}, v{vKB}")
    A(f"ds_read_b128 {vr(KA,4)}, v{vKA}")
    for tt in range(2):
        A(f"v_mov_b32 v{SH[tt]+1}, v{SH[tt]}")
    A("s_nop 1")
    for tt in range(2):
        A(f"v_permlane32_swap_b32 v{SH[tt]}, v{SH[tt]+1}")
    A("s_nop 1")
    for tt in range(2):
        A(f"v_max_f32 v{SH[tt]}, v{SH[tt]}, v{SH[tt]+1}")
        A(f"v_sub_f32 v{SH[tt]}, 0, v{SH[tt]}")
        for r in range(1, 16):
            A(f"v_mov_b32 v{SH[tt]+r}, v{SH[tt]}")
    A("s_waitcnt lgkmcnt(0)")
    A(f"v_mfma_f32_32x32x8_bf16 {vr(Sx[0],16)}, {vr(KB,2)}, {vr(QB[0],2)}, {vr(SH[0],16)}")
    A("s_nop 9")
    A(f"v_mfma_f32_32x32x16_bf16 {vr(Sx[0],16)}, {vr(KA,4)}, {vr(QA[0],4)}, {vr(Sx[0],16)}")
    A("s_nop 9")
    A("s_mov_b32 s29, 0")
    A(".p2align 6")
    A("attn_loop:")
    def slot(q, i):
        n = q ^ 1
        def e(r): A(f"v_exp_f32 v{T+r%4}, v{Sx[q]+r}")
        def c(j, buf=q): A(f"v_cvt_pk_bf16_f32 v{P[buf]+j}, v{T+(2*j)%4}, v{T+(2*j+1)%4}")
        if q == 1: A("s_waitcnt lgkmcnt(3)")
        A(f"v_mfma_f32_32x32x8_bf16 {vr(Sx[n],16)}, {vr(KB,2)}, {vr(QB[n],2)}, {vr(SH[n],16)}")
        if q == 0: A(f"ds_read_b64 {vr(KB,2)}, v{vKB} offset:{(i+1)*TILE}")
        c(7, n); e(0); e(1); e(2); c(0); e(3)
        if q == 1: A("s_waitcnt lgkmcnt(2)")
        A(f"v_mfma_f32_32x32x16_bf16 {vr(O[n],16)}, {vr(V0,4)}, {vr(P[n],4)}, {vr(O[n],16)}")
        if q == 0:
            A("s_mov_b64 exec, s[32:33]")
            A(f"ds_read_b128 {vr(V0,4)}, v{vV} offset:{i*TILE}")
            A("s_mov_b64 exec, -1")
        e(4); c(1); e(5); e(6); c(2); e(7)
        if q == 1: A("s_waitcnt lgkmcnt(1)")
        A(f"v_mfma_f32_32x32x16_bf16 {vr(Sx[n],16)}, {vr(KA,4)}, {vr(QA[n],4)}, {vr(Sx[n],16)}")
        if q == 0: A(f"ds_read_b128 {vr(KA,4)}, v{vKA} offset:{(i+1)*TILE}")
        e(8); c(3); e(9); e(10); c(4); e(11)
        if q == 1: A("s_waitcnt lgkmcnt(0)")
        A(f"v_mfma_f32_32x32x16_bf16 {vr(O[n],16)}, {vr(V1,4)}, {vr(P[n]+4,4)}, {vr(O[n],16)}")
        if q == 0:
            A("s_mov_b64 exec, s[32:33]")
            A(f"ds_read_b128 {vr(V1,4)}, v{vV} offset:{i*TILE+640}")
            A("s_mov_b64 exec, -1")
        e(12); c(5); e(13); e(14); c(6); e(15)
    for i in range(4):
        slot(0, i)
        slot(1, i)
    A(f"v_add_u32 v{vKA}, {4*TILE}, v{vKA}")
    A(f"v_add_u32 v{vKB}, {4*TILE}, v{vKB}")
    A(f"v_add_u32 v{vV}, {4*TILE}, v{vV}")
    A("s_add_u32 s29, s29, 1")
    A("s_cmp_lg_u32 s29, 1")
    A("s_cbranch_scc1 attn_nobar")
    A("s_waitcnt vmcnt(0)")
    A("s_barrier")
    A("attn_nobar:")
    A("s_cmp_lt_u32 s29, 8")
    A("s_cbranch_scc1 attn_loop")
    A(f"v_cvt_pk_bf16_f32 v{P[1]+7}, v{T+2}, v{T+3}")
    A(f"v_mfma_f32_32x32x16_bf16 {vr(O[1],16)}, {vr(V0,4)}, {vr(P[1],4)}, {vr(O[1],16)}")
    A("s_nop 1")
    A(f"v_mfma_f32_32x32x16_bf16 {vr(O[1],16)}, {vr(V1,4)}, {vr(P[1]+4,4)}, {vr(O[1],16)}")
    A("s_lshl_b32 s34, s24, 12")
    A("s_xor_b32 s35, s34, 16384")
    A(f"v_add_u32 v{t0}, s34, v{vL16}")
    A(f"v_add_u32 v{T}, s35, v{vL16}")
    A(f"v_mov_b32 v{T+1}, 0")
    A(f"v_mov_b32 v{T+2}, 40960")
    A("s_mul_i32 s34, s27, 1280")
    A("s_add_u32 s34, s34, s40")
    A(f"s_add_u32 s34, s34, {OBUF}")
    A("s_nop 3")
    A("s_barrier")
    A(f"ds_write_b32 v{T+2}, v{T+1}")
    A("s_cmp_eq_u32 s27, 0")
    A("s_cbranch_scc1 attn_ep0")
    for kh in (1, 0):
        if kh == 0:
            A("attn_ep0:")
        keep, send = O[kh], O[kh ^ 1]
        for g in range(4):
            A(f"ds_write_b128 v{t0}, {vr(send+4*g,4)} offset:{g*1024}")
        A("s_waitcnt lgkmcnt(0)")
        A("s_barrier")
        for g in range(4):
            A(f"ds_read_b128 {vr(Sx[0]+4*g,4)}, v{T} offset:{g*1024}")
        A("s_waitcnt lgkmcnt(0)")
        for r in range(13):
            A(f"v_add_f32 v{Sx[0]+r}, v{Sx[0]+r}, v{keep+r}")
        if kh == 1:
            A("s_branch attn_fin")
    A("attn_fin:")
    X = Sx[0]
    A(f"v_rcp_f32 v{X+13}, v{X+12}")
    A(f"v_add_f32 v{X+14}, abs(v{X}), abs(v{X+1})")
    for r in range(2, 12):
        A(f"v_add_f32 v{X+14}, v{X+14}, abs(v{X+r})")
    for r in range(12):
        A(f"v_mul_f32 v{X+r}, v{X+r}, v{X+13}")
    for j in range(6):
        A(f"v_cvt_pk_bf16_f32 v{P[0]+j}, v{X+2*j}, v{X+2*j+1}")
    A(f"buffer_store_dwordx4 {vr(P[0],4)}, v{vL16}, s[12:15], s34 offen")
    A(f"buffer_store_dwordx2 {vr(P[0]+4,2)}, v{vQB}, s[12:15], s34 offen offset:1024")
    A("s_cmp_lg_u32 s30, 0")
    A("s_cbranch_scc1 attn_exit")
    A(f"v_mov_b32 v{T}, {fhex(2.0**40)}")
    A(f"v_mov_b32 v{T+3}, {fhex(2.0**120)}")
    A(f"v_cmp_nlt_f32 vcc, v{X+12}, v{T}")
    A(f"v_cmp_nlt_f32 s[36:37], v{X+14}, v{T+3}")
    A(f"v_mov_b32 v{T+1}, 1")
    A("s_nop 3")
    A("s_or_b64 s[36:37], vcc, s[36:37]")
    A("s_cbranch_scc0 attn_vote")
    A(f"ds_write_b32 v{T+2}, v{T+1}")
    A("attn_vote:")
    A("s_waitcnt lgkmcnt(0)")
    A("s_barrier")
    A(f"ds_read_b32 v{T+1}, v{T+2}")
    A("s_waitcnt lgkmcnt(0)")
    A(f"v_readfirstlane_b32 s36, v{T+1}")
    A("s_nop 3")
    A("s_cmp_eq_u32 s36, 0")
    A("s_cbranch_scc1 attn_exit")
    A("s_mov_b32 s30, 1")
    A("s_waitcnt vmcnt(0)")
    A("s_barrier")
    A("s_branch attn_restart")
    A("attn_exit:")
    A("s_endpgm")
    return [("attn_kernel", NV)]
```

```python
from common import *
import math

NS = 4
SLOT = 32768
EP = NS*SLOT
LDS_QKV = EP + 12288
NST = 10

def gen_qkv(A):
    entry(A, "qkv1_kernel")
    A("s_mov_b32 s3, 0")
    A("s_branch qkv_body")
    entry(A, "qkv2_kernel")
    A("s_mov_b32 s3, 1")
    A("qkv_body:")
    A("s_cmp_ge_u32 s2, 256")
    A("s_cbranch_scc1 qkv_exit")
    A("s_load_dwordx4 s[4:7], s[0:1], 0")
    A("s_load_dwordx2 s[8:9], s[0:1], 80")
    A("v_lshrrev_b32 v2, 6, v0")
    A("v_and_b32 v1, 63, v0")
    A("s_and_b32 s34, s2, 7")
    A("v_readfirstlane_b32 s24, v2")
    A("s_lshr_b32 s35, s2, 3")
    A("s_lshr_b32 s25, s34, 1")
    A("s_lshl_b32 s25, s25, 2")
    A("s_and_b32 s36, s35, 3")
    A("s_add_u32 s25, s25, s36")
    A("s_and_b32 s26, s34, 1")
    A("s_lshl_b32 s26, s26, 3")
    A("s_lshr_b32 s36, s35, 2")
    A("s_add_u32 s26, s26, s36")
    A("s_lshr_b32 s27, s24, 2")
    A("s_and_b32 s28, s24, 3")
    vA0, vA1, vB, vArc, vBrc, vAr0, vAr1, vBr = 3, 4, 5, 6, 7, 8, 9, 10
    sx0, sx1, sq0, sq1, cs, ones = 11, 12, 13, 14, 15, 16
    t0, t1, t2, t3, t4 = 17, 18, 19, 20, 21
    ACC = 24
    AF = 56
    BF = 88
    NV = 104
    A(f"v_lshrrev_b32 v{t0}, 2, v1")
    A(f"v_and_b32 v{t0}, 7, v{t0}")
    A(f"v_lshrrev_b32 v{t1}, 2, v{t0}")
    A(f"v_and_b32 v{t2}, 3, v1")
    A(f"v_xor_b32 v{t2}, v{t2}, v{t1}")
    A(f"v_lshlrev_b32 v{t2}, 4, v{t2}")
    A(f"v_lshrrev_b32 v{t3}, 5, v1")
    A(f"v_lshl_add_u32 v{t2}, v{t3}, 6, v{t2}")
    A("s_lshl_b32 s36, s25, 7")
    A("s_lshl_b32 s37, s24, 4")
    A("s_add_u32 s36, s36, s37")
    A(f"v_add_u32 v{t0}, s36, v{t0}")
    A(f"v_mul_u32_u24 v{t0}, 1280, v{t0}")
    A(f"v_add_u32 v{vA0}, v{t0}, v{t2}")
    A(f"v_xor_b32 v{t2}, 32, v{t2}")
    A(f"v_add_u32 v{vA1}, v{t0}, v{t2}")
    A(f"v_add_u32 v{vA1}, {8*1280}, v{vA1}")
    A(f"v_lshrrev_b32 v{t0}, 2, v1")
    A(f"v_and_b32 v{t0}, 3, v{t0}")
    A(f"v_lshl_add_u32 v{t1}, v{t3}, 2, v{t0}")
    A("s_lshl_b32 s36, s24, 3")
    A(f"v_add_u32 v{t1}, s36, v{t1}")
    A(f"v_mul_u32_u24 v{t1}, 3840, v{t1}")
    A(f"v_bfe_u32 v{t2}, v1, 4, 1")
    A(f"v_and_b32 v{t4}, 3, v1")
    A(f"v_lshlrev_b32 v{vB}, 4, v{t4}")
    A(f"v_lshl_add_u32 v{vB}, v{t2}, 6, v{vB}")
    A("s_lshl_b32 s36, s26, 8")
    A(f"v_add3_u32 v{vB}, v{vB}, v{t1}, s36")
    A(f"v_lshlrev_b32 v{vBrc}, 3, v{t4}")
    A(f"v_lshl_add_u32 v{vBrc}, v{t2}, 5, v{vBrc}")
    A(f"v_lshl_add_u32 v{vBrc}, v{t0}, 6, v{vBrc}")
    A(f"v_lshl_add_u32 v{vBrc}, v{t3}, 11, v{vBrc}")
    A("s_lshr_b32 s36, s28, 1")
    A("s_lshl_b32 s36, s36, 10")
    A("s_and_b32 s37, s28, 1")
    A("s_lshl_b32 s37, s37, 8")
    A("s_add_u32 s36, s36, s37")
    A("s_add_u32 s36, s36, 16384")
    A(f"v_add_u32 v{vBrc}, s36, v{vBrc}")
    A(f"v_bfe_u32 v{t0}, v1, 3, 2")
    A(f"v_and_b32 v{t1}, 7, v1")
    A(f"v_bfe_u32 v{t2}, v1, 2, 2")
    A(f"v_xor_b32 v{t2}, v{t2}, v{t3}")
    A(f"v_lshlrev_b32 v{vArc}, 4, v{t2}")
    A(f"v_lshl_add_u32 v{vArc}, v{t1}, 6, v{vArc}")
    A(f"v_lshl_add_u32 v{vArc}, v{t0}, 10, v{vArc}")
    A("s_lshl_b32 s36, s27, 13")
    A(f"v_add_u32 v{vArc}, s36, v{vArc}")
    A("s_waitcnt lgkmcnt(0)")
    A(f"s_add_u32 s10, s8, {X2BUF}")
    A("s_addc_u32 s11, s9, 0")
    A("s_cmp_eq_u32 s3, 0")
    A("s_cselect_b32 s4, s4, s10")
    A("s_cselect_b32 s5, s5, s11")
    srd(A, 12, 4, XBYTES)
    srd(A, 16, 6, D*3*D*2)
    srd(A, 20, 8, WS_USED)
    A("s_cmp_lt_u32 s26, 15")
    A("s_cbranch_scc1 qkv_go")
    A("v_mov_b32 v2, 0")
    A("v_mov_b32 v3, 0")
    A("s_lshl_b32 s36, s25, 10")
    A(f"s_add_u32 s36, s36, {STATS}")
    A("v_lshlrev_b32 v4, 3, v0")
    A("v_cmp_gt_u32 vcc, 128, v0")
    A("s_and_saveexec_b64 s[38:39], vcc")
    A("s_cbranch_execz qkv_exit")
    A("buffer_store_dwordx2 v[2:3], v4, s[20:23], s36 offen")
    A("s_endpgm")
    A("qkv_go:")
    A("s_mov_b32 s30, 0")
    A("s_mov_b32 s31, 0")
    A("s_lshl_b32 s40, s24, 11")
    A("s_mov_b32 s32, s40")
    def dma():
        A("s_mov_b32 m0, s32")
        A("s_add_u32 s36, s31, 128")
        A(f"buffer_load_dwordx4 v{vA0}, s[12:15], s30 offen lds")
        A("s_add_u32 m0, s32, 1024")
        A("s_add_u32 s37, s32, 16384")
        A(f"buffer_load_dwordx4 v{vA1}, s[12:15], s30 offen lds")
        A("s_mov_b32 m0, s37")
        A("s_add_u32 s30, s30, 128")
        A(f"buffer_load_dwordx4 v{vB}, s[16:19], s31 offen lds")
        A("s_add_u32 m0, s37, 1024")
        A(f"s_add_u32 s31, s31, {64*3840}")
        A(f"buffer_load_dwordx4 v{vB}, s[16:19], s36 offen lds")
        A(f"s_add_u32 s32, s32, {SLOT}")
        A(f"s_and_b32 s32, s32, {NS*SLOT-1}")
    for i in range(NS-1):
        dma()
    for r in range(32):
        A(f"v_mov_b32 v{ACC+r}, 0")
    for r in (sx0, sx1, sq0, sq1, cs):
        A(f"v_mov_b32 v{r}, 0")
    A(f"v_mov_b32 v{ones}, 0x3f803f80")
    A("s_mov_b32 s29, 0")
    A("s_mov_b32 s33, 0")
    A("s_cmp_ge_u32 s26, 10")
    A("s_cbranch_scc1 qkv_loopV")
    for mode in ("QK", "V"):
        A(f"qkv_loop{mode}:")
        A(f"s_cmp_lt_u32 s29, {NST-NS+1}")
        A(f"s_cselect_b32 s14, {XBYTES}, 0")
        A(f"s_cselect_b32 s18, {D*3*D*2}, 0")
        A(f"v_add_u32 v{vAr0}, s33, v{vArc}")
        A(f"v_add_u32 v{vBr}, s33, v{vBrc}")
        A(f"s_waitcnt vmcnt({4*(NS-2)})")
        A("s_barrier")
        A(f"v_xor_b32 v{vAr1}, 32, v{vAr0}")
        for t in range(4):
            ar = vAr0 if t % 2 == 0 else vAr1
            for tt in range(2):
                A(f"ds_read_b128 {vr(AF+t*8+tt*4,4)}, v{ar} offset:{tt*4096+(t>>1)*512}")
            for j in range(2):
                A(f"ds_read_b64_tr_b16 {vr(BF+t*4+j*2,2)}, v{vBr} offset:{t*4096+j*512}")
            if t == 1:
                dma()
        for t in range(4):
            A(f"s_waitcnt lgkmcnt({12-4*t})")
            for tt in range(2):
                a, b = vr(BF+t*4,4), vr(AF+t*8+tt*4,4)
                if mode == "V":
                    a, b = b, a
                A(f"v_mfma_f32_32x32x16_bf16 {vr(ACC+tt*16,16)}, {a}, {b}, {vr(ACC+tt*16,16)}")
            sk = A.label("qs")
            A(f"s_cmp_lg_u32 s28, {t}")
            A(f"s_cbranch_scc1 {sk}")
            for tt in range(2):
                for r in range(4):
                    x = AF+t*8+tt*4+r
                    A(f"v_dot2c_f32_bf16 v{(sx0,sx1)[tt]}, v{x}, v{ones}")
                    A(f"v_dot2c_f32_bf16 v{(sq0,sq1)[tt]}, v{x}, v{x}")
            A(f"{sk}:")
            if t % 2 == 1:
                sk = A.label("qc")
                A(f"s_cmp_lg_u32 s27, {t>>1}")
                A(f"s_cbranch_scc1 {sk}")
                for r in range(8):
                    A(f"v_dot2c_f32_bf16 v{cs}, v{BF+(t-1)*4+r}, v{ones}")
                A(f"{sk}:")
        A(f"s_add_u32 s33, s33, {SLOT}")
        A(f"s_and_b32 s33, s33, {NS*SLOT-1}")
        A("s_add_u32 s29, s29, 1")
        A(f"s_cmp_lt_u32 s29, {NST}")
        A(f"s_cbranch_scc1 qkv_loop{mode}")
        if mode == "QK":
            A("s_branch qkv_epi")
    A("qkv_epi:")
    PS, PQ, PC = EP, EP+4096, EP+8192
    FR, FM, FC = EP+10240, EP+10752, EP+11264
    A(f"v_lshrrev_b32 v{t3}, 5, v1")
    A(f"v_and_b32 v{t4}, 31, v1")
    A(f"v_lshlrev_b32 v{t0}, 2, v{t4}")
    A(f"v_lshl_add_u32 v{t0}, v{t3}, 9, v{t0}")
    A("s_lshl_b32 s36, s28, 10")
    A("s_lshl_b32 s37, s27, 8")
    A("s_add_u32 s36, s36, s37")
    A(f"s_add_u32 s36, s36, {PS}")
    A(f"v_add_u32 v{t1}, s36, v{t0}")
    A("s_lshl_b32 s36, s27, 10")
    A("s_lshl_b32 s37, s28, 7")
    A("s_add_u32 s36, s36, s37")
    A(f"s_add_u32 s36, s36, {PC}")
    A(f"v_add_u32 v{t2}, s36, v{t0}")
    A(f"ds_write_b32 v{t1}, v{sx0}")
    A(f"ds_write_b32 v{t1}, v{sx1} offset:128")
    A(f"ds_write_b32 v{t1}, v{sq0} offset:4096")
    A(f"ds_write_b32 v{t1}, v{sq1} offset:{4096+128}")
    A(f"ds_write_b32 v{t2}, v{cs}")
    A("s_waitcnt lgkmcnt(0)")
    A("s_barrier")
    A("s_cmp_ge_u32 s24, 4")
    A("s_cbranch_scc1 qkv_fin_done")
    A(f"v_and_b32 v{t0}, 127, v0")
    A(f"v_lshlrev_b32 v{t0}, 2, v{t0}")
    A(f"v_add_u32 v{t0}, {EP}, v{t0}")
    A("s_cmp_ge_u32 s24, 2")
    A("s_cbranch_scc1 qkv_fin_col")
    for i in range(8):
        A(f"ds_read_b32 v{AF+i}, v{t0} offset:{i*512}")
    A("s_waitcnt lgkmcnt(0)")
    for i in range(8):
        A(f"ds_read_b32 v{AF+8+i}, v{t0} offset:{4096+i*512}")
    for i in range(1, 8):
        A(f"v_add_f32 v{AF}, v{AF}, v{AF+i}")
    A("s_waitcnt lgkmcnt(0)")
    for i in range(1, 8):
        A(f"v_add_f32 v{AF+8}, v{AF+8}, v{AF+8+i}")
    A(f"v_mul_f32 v{AF}, {fhex(1.0/640)}, v{AF}")
    A(f"v_mul_f32 v{AF+8}, {fhex(1.0/640)}, v{AF+8}")
    A(f"v_fma_f32 v{AF+8}, -v{AF}, v{AF}, v{AF+8}")
    A(f"v_max_f32 v{AF+8}, 0, v{AF+8}")
    A(f"v_add_f32 v{AF+8}, {fhex(1e-5)}, v{AF+8}")
    A(f"v_rsq_f32 v{AF+8}, v{AF+8}")
    c = (20 ** -0.5) * math.log2(math.e)
    A("s_cmp_lt_u32 s26, 5")
    A(f"s_cselect_b32 s36, {fhex(c)}, 1.0")
    A(f"v_mul_f32 v{AF+8}, s36, v{AF+8}")
    A(f"ds_write_b32 v{t0}, v{AF+8} offset:{FR-EP}")
    A(f"ds_write_b32 v{t0}, v{AF} offset:{FM-EP}")
    A("s_branch qkv_fin_done")
    A("qkv_fin_col:")
    for i in range(4):
        A(f"ds_read_b32 v{AF+i}, v{t0} offset:{PC-EP+i*512}")
    A("s_waitcnt lgkmcnt(0)")
    A(f"v_add_f32 v{AF}, v{AF}, v{AF+1}")
    A(f"v_add_f32 v{AF+2}, v{AF+2}, v{AF+3}")
    A(f"v_add_f32 v{AF}, v{AF}, v{AF+2}")
    A(f"ds_write_b32 v{t0}, v{AF} offset:{FC-EP}")
    A("qkv_fin_done:")
    A("s_waitcnt lgkmcnt(0)")
    A("s_barrier")
    A("s_lshl_b32 s41, s25, 2")
    A("s_lshl_b32 s36, s27, 1")
    A("s_add_u32 s41, s41, s36")
    A("s_cmp_ge_u32 s26, 10")
    A("s_cbranch_scc1 qkv_epiV")
    A("s_lshl_b32 s36, s27, 8")
    A(f"s_add_u32 s36, s36, {FR}")
    A(f"v_lshl_add_u32 v{t0}, v{t4}, 2, s36")
    A(f"ds_read_b32 v{AF+16}, v{t0}")
    A(f"ds_read_b32 v{AF+17}, v{t0} offset:128")
    A(f"ds_read_b32 v{AF+18}, v{t0} offset:{FM-FR}")
    A(f"ds_read_b32 v{AF+19}, v{t0} offset:{FM-FR+128}")
    A("s_lshl_b32 s36, s28, 7")
    A(f"s_add_u32 s36, s36, {FC}")
    A(f"v_lshl_add_u32 v{t1}, v{t3}, 4, s36")
    for g in range(4):
        A(f"ds_read_b128 {vr(AF+4*g,4)}, v{t1} offset:{g*32}")
    A("s_cmp_lt_u32 s26, 5")
    A("s_movk_i32 s42, 2560")
    A("s_cselect_b32 s42, 1280, s42")
    assert QBUF == 0
    A(f"s_cselect_b32 s43, 0, {KVBUF}")
    A("s_cselect_b32 s36, 0, 5")
    A("s_sub_u32 s36, s26, s36")
    A("s_lshl_b32 s36, s36, 5")
    A("s_lshl_b32 s37, s28, 3")
    A("s_add_u32 s36, s36, s37")
    A("s_mul_i32 s37, s41, s42")
    A("s_add_u32 s43, s43, s37")
    A("s_add_u32 s44, s43, s42")
    A("s_lshl_b32 s42, s42, 6")
    ADR = BF
    for g in range(4):
        a = ADR+g
        A(f"v_add_u32 v{t0}, s36, v{t3}")
        if g:
            A(f"v_add_u32 v{t0}, {2*g}, v{t0}")
        A(f"v_mul_u32_u24 v{t1}, 205, v{t0}")
        A(f"v_lshrrev_b32 v{t1}, 10, v{t1}")
        A(f"v_mul_u32_u24 v{t2}, 5, v{t1}")
        A(f"v_sub_u32 v{t2}, v{t0}, v{t2}")
        A(f"v_mul_lo_u32 v{a}, v{t1}, s42")
        A(f"v_lshrrev_b32 v{t0}, 1, v{t2}")
        A(f"v_lshl_add_u32 v{a}, v{t0}, 9, v{a}")
        A(f"v_and_b32 v{t0}, 1, v{t2}")
        A(f"v_lshl_add_u32 v{a}, v{t0}, 3, v{a}")
        A(f"v_lshrrev_b32 v{t0}, 2, v{t2}")
        A(f"v_sub_u32 v{t0}, 4, v{t0}")
        A(f"v_lshlrev_b32 v{t0}, v{t0}, v{t4}")
        A(f"v_add_u32 v{a}, v{a}, v{t0}")
    A("s_waitcnt lgkmcnt(0)")
    for tt in range(2):
        R, M = AF+16+tt, AF+18+tt
        for r in range(16):
            x = ACC+tt*16+r
            A(f"v_fma_f32 v{x}, -v{M}, v{AF+r}, v{x}")
        for r in range(16):
            x = ACC+tt*16+r
            A(f"v_mul_f32 v{x}, v{R}, v{x}")
        for g in range(4):
            x = ACC+tt*16+4*g
            p = BF+4+tt*0+2*g if tt == 0 else AF+20+2*g
            A(f"v_cvt_pk_bf16_f32 v{p}, v{x}, v{x+1}")
            A(f"v_cvt_pk_bf16_f32 v{p+1}, v{x+2}, v{x+3}")
            A(f"buffer_store_dwordx2 {vr(p,2)}, v{ADR+g}, s[20:23], s{43+tt} offen")
    A("s_endpgm")
    A("qkv_epiV:")
    A("s_lshl_b32 s36, s28, 7")
    A(f"s_add_u32 s36, s36, {FC}")
    A(f"v_lshl_add_u32 v{t0}, v{t4}, 2, s36")
    A(f"ds_read_b32 v{cs}, v{t0}")
    A("s_lshl_b32 s36, s27, 8")
    A(f"s_add_u32 s36, s36, {FR}")
    A(f"v_lshl_add_u32 v{t1}, v{t3}, 4, s36")
    A("s_sub_u32 s36, s26, 10")
    A("s_lshl_b32 s36, s36, 7")
    A("s_lshl_b32 s37, s28, 5")
    A("s_add_u32 s36, s36, s37")
    A(f"v_add_u32 v{t0}, s36, v{t4}")
    A(f"v_mul_u32_u24 v{t2}, 3277, v{t0}")
    A(f"v_lshrrev_b32 v{t2}, 16, v{t2}")
    A(f"v_mul_u32_u24 v{vA0}, 20, v{t2}")
    A(f"v_sub_u32 v{vA0}, v{t0}, v{vA0}")
    A(f"v_mul_u32_u24 v{t2}, {64*2560}, v{t2}")
    A(f"v_lshl_add_u32 v{vA0}, v{vA0}, 4, v{t2}")
    A(f"v_mul_u32_u24 v{t2}, 320, v{t3}")
    A(f"v_add_u32 v{vA0}, v{vA0}, v{t2}")
    A("s_mul_i32 s43, s41, 2560")
    A(f"s_add_u32 s43, s43, {KVBUF+1280}")
    A("s_add_u32 s44, s43, 2560")
    for tt in range(2):
        for g in range(4):
            A(f"ds_read_b128 {vr(AF+4*g,4)}, v{t1} offset:{tt*128+g*32}")
            A(f"ds_read_b128 {vr(AF+16+4*g,4)}, v{t1} offset:{FM-FR+tt*128+g*32}")
        A("s_waitcnt lgkmcnt(0)")
        for r in range(16):
            x = ACC+tt*16+r
            A(f"v_fma_f32 v{x}, -v{AF+16+r}, v{cs}, v{x}")
        for r in range(16):
            x = ACC+tt*16+r
            A(f"v_mul_f32 v{x}, v{AF+r}, v{x}")
        for f in range(2):
            p = BF+tt*8+4*f
            for i in range(4):
                x = ACC+tt*16+8*f+2*i
                A(f"v_cvt_pk_bf16_f32 v{p+i}, v{x}, v{x+1}")
            A(f"buffer_store_dwordx4 {vr(p,4)}, v{vA0}, s[20:23], s{43+tt} offen offset:{f*640}")
    A("qkv_exit:")
    A("s_endpgm")
    return [("qkv1_kernel", NV), ("qkv2_kernel", NV)]

assert all((g*205)>>10 == g//5 for g in range(160))
assert all((n*3277)>>16 == n//20 for n in range(640))
```

```python
from common import *
from k_wo import inblock, dmarow
import math

NW = 5
WR = 0
HR = NW*16384
TAB = HR + 32768
LDS_W1 = TAB + 16384

def gen_w1(A):
    entry(A, "w1_kernel")
    A("s_cmp_ge_u32 s2, 240")
    A("s_cbranch_scc1 w1_exit")
    A("s_load_dwordx4 s[4:7], s[0:1], 32")
    A("s_load_dwordx2 s[8:9], s[0:1], 80")
    vX, vW, vWrc, vHrc, vWr, vHr, vHw, vHwc, vT = 2, 3, 4, 5, 6, 7, 8, 9, 10
    t0, t1, t2, t3 = 11, 12, 13, 14
    ST = 16
    U = 20
    PK = 28
    BI = 36
    ACC = 40
    WF = 56
    HF = 72
    XR = 88
    NV = 120
    A("v_lshrrev_b32 v2, 6, v0")
    A("v_and_b32 v1, 63, v0")
    A("s_and_b32 s34, s2, 7")
    A("v_readfirstlane_b32 s24, v2")
    A("s_lshr_b32 s35, s2, 3")
    A("s_mul_i32 s25, s35, 43")
    A("s_lshr_b32 s25, s25, 7")
    A("s_mul_i32 s36, s25, 3")
    A("s_sub_u32 s36, s35, s36")
    A("s_mul_i32 s26, s34, 3")
    A("s_add_u32 s26, s26, s36")
    A("s_and_b32 s27, s24, 1")
    A("s_bfe_u32 s28, s24, 0x10001")
    A("s_lshr_b32 s29, s24, 2")
    dmarow(A, vX, t0, 1280)
    dmarow(A, vW, t0, 3072)
    A(f"s_mul_i32 s36, s24, {16*1280}")
    A("s_lshl_b32 s37, s25, 7")
    A("s_add_u32 s36, s36, s37")
    A(f"v_add_u32 v{vX}, s36, v{vX}")
    A(f"s_mul_i32 s36, s24, {16*3072}")
    A("s_lshl_b32 s37, s26, 7")
    A("s_add_u32 s36, s36, s37")
    A(f"v_add_u32 v{vW}, s36, v{vW}")
    A(f"v_lshrrev_b32 v{t0}, 2, v1")
    A(f"v_lshlrev_b32 v{t0}, 10, v{t0}")
    A(f"v_and_b32 v{t1}, 3, v1")
    A(f"v_lshl_add_u32 v{t0}, v{t1}, 5, v{t0}")
    A("s_lshl_b32 s36, s24, 7")
    A(f"s_add_u32 s36, s36, {STATS}")
    A(f"v_lshrrev_b32 v{t3}, 5, v1")
    A("s_lshl_b32 s37, s26, 7")
    A("s_lshl_b32 s38, s27, 6")
    A("s_add_u32 s37, s37, s38")
    A("s_lshl_b32 s38, s29, 4")
    A("s_add_u32 s37, s37, s38")
    A(f"v_lshlrev_b32 v{t2}, 3, v{t3}")
    A("s_waitcnt lgkmcnt(0)")
    srd_off(A, 12, 8, X1BUF, XBYTES)
    srd(A, 16, 4, S*F*2)
    srd(A, 20, 8, WS_USED)
    srd(A, 40, 6, F*2)
    A(f"buffer_load_dwordx4 {vr(WF,4)}, v{t0}, s[20:23], s36 offen")
    A(f"buffer_load_dwordx4 {vr(WF+4,4)}, v{t0}, s[20:23], s36 offen offset:16")
    A(f"buffer_load_dwordx2 {vr(BI,2)}, v{t2}, s[40:43], s37 offen")
    A(f"buffer_load_dwordx2 {vr(BI+2,2)}, v{t2}, s[40:43], s37 offen offset:32")
    A("s_mov_b32 s30, 0")
    A("s_mov_b32 s31, 0")
    A("s_lshl_b32 s39, s24, 11")
    A("s_mov_b32 s32, s39")
    A(f"s_add_u32 s44, s39, {NW*16384}")
    def xload(slot):
        A(f"s_add_u32 s36, s30, {8*1280}")
        A(f"buffer_load_dwordx4 {vr(XR+8*slot,4)}, v{vX}, s[12:15], s30 offen")
        A(f"buffer_load_dwordx4 {vr(XR+8*slot+4,4)}, v{vX}, s[12:15], s36 offen")
        A(f"s_add_u32 s30, s30, {128*1280}")
    def wdma():
        A("s_mov_b32 m0, s32")
        A(f"s_add_u32 s36, s31, {8*3072}")
        A(f"buffer_load_dwordx4 v{vW}, s[16:19], s31 offen lds")
        A("s_add_u32 m0, s32, 1024")
        A(f"s_add_u32 s31, s31, {128*3072}")
        A(f"buffer_load_dwordx4 v{vW}, s[16:19], s36 offen lds")
        A("s_add_u32 s32, s32, 16384")
        A("s_cmp_eq_u32 s32, s44")
        A("s_cselect_b32 s32, s39, s32")
    for i in range(4):
        xload(i)
        wdma()
    inblock(A, t1, t0)
    A(f"v_lshl_add_u32 v{t1}, v{t3}, 10, v{t1}")
    A("s_lshl_b32 s36, s29, 13")
    A("s_lshl_b32 s37, s27, 8")
    A("s_add_u32 s37, s37, s36")
    A(f"v_add_u32 v{vWrc}, s37, v{t1}")
    A("s_lshl_b32 s37, s28, 8")
    A("s_add_u32 s37, s37, s36")
    A(f"s_add_u32 s37, s37, {HR}")
    A(f"v_add_u32 v{vHrc}, s37, v{t1}")
    A(f"s_add_u32 s37, s39, {HR}")
    A(f"v_lshlrev_b32 v{vHwc}, 4, v1")
    A(f"v_add_u32 v{vHwc}, s37, v{vHwc}")
    A(f"s_add_u32 s37, s39, {TAB}")
    A(f"v_lshlrev_b32 v{t2}, 5, v1")
    A(f"v_add_u32 v{t2}, s37, v{t2}")
    A(f"v_bfe_u32 v{t0}, v1, 2, 2")
    A(f"v_lshl_add_u32 v{t0}, v{t3}, 2, v{t0}")
    A(f"v_lshlrev_b32 v{vT}, 3, v{t0}")
    A(f"v_add_u32 v{vT}, s37, v{vT}")
    for r in range(16):
        A(f"v_mov_b32 v{ACC+r}, 0")
    A("s_waitcnt vmcnt(18)")
    for i in range(4):
        s_, q_ = WF+2*i, WF+2*i+1
        A(f"v_mul_f32 v{s_}, {fhex(1.0/640)}, v{s_}")
        A(f"v_mul_f32 v{q_}, {fhex(1.0/640)}, v{q_}")
        A(f"v_fma_f32 v{q_}, -v{s_}, v{s_}, v{q_}")
        A(f"v_max_f32 v{q_}, 0, v{q_}")
        A(f"v_add_f32 v{U+i}, {fhex(1e-5)}, v{q_}")
        A(f"v_rsq_f32 v{U+i}, v{U+i}")
    A("s_nop 0")
    for i in range(4):
        q_ = WF+2*i+1
        A(f"v_mul_f32 v{q_}, v{q_}, v{U+i}")
        A(f"v_mul_f32 v{q_}, v{q_}, v{U+i}")
        A(f"v_add_f32 v{q_}, {fhex(1e-5)}, v{q_}")
        A(f"v_rsq_f32 v{q_}, v{q_}")
    A("s_nop 0")
    for i in range(4):
        s_, q_ = WF+2*i, WF+2*i+1
        A(f"v_mul_f32 v{HF+2*i}, v{q_}, v{U+i}")
        A(f"v_mul_f32 v{HF+2*i+1}, -v{s_}, v{HF+2*i}")
    A(f"ds_write_b128 v{t2}, {vr(HF,4)}")
    A(f"ds_write_b128 v{t2}, {vr(HF+4,4)} offset:16")
    A("s_mov_b32 s45, 0xffff0000")
    A("s_waitcnt lgkmcnt(0)")
    def statread():
        A(f"ds_read_b64 {vr(ST,2)}, v{vT}")
        A(f"ds_read_b64 {vr(ST+2,2)}, v{vT} offset:64")
        A(f"v_add_u32 v{vT}, 128, v{vT}")
    def norm_ops(slot):
        ops = []
        for e in range(2):
            x = XR+8*slot+4*e
            R, B = ST+2*e, ST+2*e+1
            for i in range(4):
                ops.append(f"v_lshlrev_b32 v{U+2*i}, 16, v{x+i}")
                ops.append(f"v_and_b32 v{U+2*i+1}, s45, v{x+i}")
            for i in range(8):
                ops.append(f"v_fma_f32 v{U+i}, v{U+i}, v{R}, v{B}")
            for i in range(4):
                ops.append(f"v_cvt_pk_bf16_f32 v{PK+4*e+i}, v{U+2*i}, v{U+2*i+1}")
            ops.append(f"ds_write_b128 v{vHw}, {vr(PK+4*e,4)} offset:{e*1024}")
        return ops
    statread()
    A(f"v_mov_b32 v{vHw}, v{vHwc}")
    A("s_waitcnt vmcnt(14) lgkmcnt(0)")
    for op in norm_ops(0):
        A(op)
    xload(0)
    A("s_mov_b32 s33, 0")
    A("s_mov_b32 s46, 0")
    A("s_waitcnt vmcnt(14) lgkmcnt(0)")
    A("s_barrier")
    A("w1_loop:")
    for u in range(4):
        hs = u % 2
        A("s_cmp_lt_u32 s46, 12")
        A(f"s_cselect_b32 s18, {S*F*2}, 0")
        A("s_cmp_lt_u32 s46, 11")
        A(f"s_cselect_b32 s14, {XBYTES}, 0")
        A(f"v_add_u32 v{vWr}, s33, v{vWrc}")
        statread()
        for tl in range(4):
            for j in range(2):
                A(f"ds_read_b64_tr_b16 {vr(WF+4*tl+2*j,2)}, v{vWr} offset:{tl*2048+j*512}")
            for j in range(2):
                A(f"ds_read_b64_tr_b16 {vr(HF+4*tl+2*j,2)}, v{vHrc} offset:{hs*16384+tl*2048+j*512}")
            if tl == 0:
                wdma()
        A(f"v_xor_b32 v{vHw}, 16384, v{vHw}") if (HR & 16384) == 0 else A(f"v_add_u32 v{vHw}, {16384 if hs == 0 else -16384}, v{vHw}")
        A("s_waitcnt vmcnt(14) lgkmcnt(12)")
        ops = norm_ops((u+1) % 4)
        nw = 0
        per = (len(ops)+3)//4
        for tl in range(4):
            if tl > 0:
                A(f"s_waitcnt lgkmcnt({12-4*tl+nw})")
            A(f"v_mfma_f32_32x32x16_bf16 {vr(ACC,16)}, {vr(WF+4*tl,4)}, {vr(HF+4*tl,4)}, {vr(ACC,16)}")
            for op in ops[tl*per:(tl+1)*per]:
                A(op)
                if op.startswith("ds_write"):
                    nw += 1
        xload((u+1) % 4)
        A("s_add_u32 s33, s33, 16384")
        A(f"s_cmp_eq_u32 s33, {NW*16384}")
        A("s_cselect_b32 s33, 0, s33")
        A("s_add_u32 s46, s46, 1")
        A("s_waitcnt vmcnt(14) lgkmcnt(0)")
        A("s_barrier")
    A("s_cmp_lt_u32 s46, 16")
    A("s_cbranch_scc1 w1_loop")
    A("s_waitcnt vmcnt(0)")
    A("s_barrier")
    A(f"v_lshlrev_b32 v{t0}, 4, v1")
    A("s_xor_b32 s36, s39, 8192")
    A(f"v_add_u32 v{t1}, s36, v{t0}")
    A(f"v_add_u32 v{t0}, s39, v{t0}")
    A("s_lshl_b32 s36, s25, 2")
    A("s_lshl_b32 s37, s28, 1")
    A("s_add_u32 s36, s36, s37")
    A("s_mul_i32 s36, s36, 48")
    A("s_lshl_b32 s37, s26, 1")
    A("s_add_u32 s36, s36, s37")
    A("s_add_u32 s36, s36, s27")
    A("s_lshl_b32 s36, s36, 10")
    A("s_lshl_b32 s37, s29, 9")
    A("s_add_u32 s36, s36, s37")
    A(f"s_add_u32 s47, s36, {UBUF}")
    A(f"v_bfe_u32 v{t2}, v1, 4, 1")
    A(f"v_mul_u32_u24 v{t2}, {48*1024}, v{t2}")
    A(f"v_lshl_add_u32 v{t2}, v{t3}, 8, v{t2}")
    A(f"v_and_b32 v{vX}, 15, v1")
    A(f"v_lshl_add_u32 v{vX}, v{vX}, 4, v{t2}")
    A("s_cmp_eq_u32 s29, 0")
    A("s_cbranch_scc1 w1_ep0")
    for kh in (1, 0):
        if kh == 0:
            A("w1_ep0:")
        keep, send = (ACC+4*kh, ACC+8+4*kh), (ACC+4*(kh^1), ACC+8+4*(kh^1))
        for e in range(2):
            A(f"ds_write_b128 v{t0}, {vr(send[e],4)} offset:{e*1024}")
        A("s_waitcnt lgkmcnt(0)")
        A("s_barrier")
        for e in range(2):
            A(f"ds_read_b128 {vr(WF+4*e,4)}, v{t1} offset:{e*1024}")
        A("s_waitcnt lgkmcnt(0)")
        for e in range(2):
            for r in range(4):
                A(f"v_add_f32 v{WF+4*e+r}, v{WF+4*e+r}, v{keep[e]+r}")
        if kh == 1:
            A("s_branch w1_fin")
    A("w1_fin:")
    for i in range(4):
        A(f"v_lshlrev_b32 v{U+2*i}, 16, v{BI+i}")
        A(f"v_and_b32 v{U+2*i+1}, s45, v{BI+i}")
    k0 = -2.0*math.sqrt(2.0/math.pi)*math.log2(math.e)
    A(f"s_mov_b32 s36, {fhex(k0*0.044715)}")
    A(f"v_mov_b32 v{t2}, {fhex(k0)}")
    for i in range(8):
        A(f"v_add_f32 v{WF+i}, v{WF+i}, v{U+i}")
    for i in range(8):
        A(f"v_mul_f32 v{HF+i}, v{WF+i}, v{WF+i}")
    for i in range(8):
        A(f"v_fma_f32 v{HF+i}, v{HF+i}, s36, v{t2}")
    for i in range(8):
        A(f"v_mul_f32 v{HF+i}, v{HF+i}, v{WF+i}")
    for i in range(8):
        A(f"v_exp_f32 v{HF+i}, v{HF+i}")
    for i in range(8):
        A(f"v_add_f32 v{HF+i}, 1.0, v{HF+i}")
    for i in range(8):
        A(f"v_rcp_f32 v{HF+i}, v{HF+i}")
    for i in range(8):
        A(f"v_mul_f32 v{WF+i}, v{WF+i}, v{HF+i}")
    for i in range(4):
        A(f"v_cvt_pk_bf16_f32 v{PK+i}, v{WF+2*i}, v{WF+2*i+1}")
    A(f"buffer_store_dwordx4 {vr(PK,4)}, v{vX}, s[20:23], s47 offen")
    A("w1_exit:")
    A("s_endpgm")
    return [("w1_kernel", NV)]
assert all((i*43)>>7 == i//3 for i in range(30))
```

```python
from common import *

NS2 = 4
SLOT2 = 36864
PITCH2 = 336
EPI2 = NS2*SLOT2
LDS_W2 = NS2*SLOT2
NST2 = 12

def gen_w2(A):
    entry(A, "w2a_kernel")
    A("s_mov_b32 s3, 0")
    A("s_branch w2_body")
    entry(A, "w2b_kernel")
    A("s_mov_b32 s3, 1")
    A("w2_body:")
    A("s_cmp_ge_u32 s2, 256")
    A("s_cbranch_scc1 w2_exit")
    A("s_load_dwordx4 s[4:7], s[0:1], 48")
    A("s_load_dwordx2 s[10:11], s[0:1], 64")
    A("s_load_dwordx2 s[8:9], s[0:1], 80")
    vL16, vW, vUr, vWr, vWrc, vB2 = 2, 3, 4, 5, 6, 7
    t0, t1, t2, t3 = 8, 9, 10, 11
    XO = 12
    RES = 16
    ACC = 28
    FB = (48, 72)
    NV = 96
    A("v_lshrrev_b32 v2, 6, v0")
    A("v_and_b32 v1, 63, v0")
    A("s_and_b32 s34, s2, 7")
    A("v_readfirstlane_b32 s24, v2")
    A("s_lshr_b32 s35, s2, 3")
    A("s_lshl_b32 s25, s34, 2")
    A("s_and_b32 s36, s35, 3")
    A("s_add_u32 s25, s25, s36")
    A("s_lshr_b32 s26, s35, 2")
    A(f"v_lshlrev_b32 v{vL16}, 4, v1")
    A(f"v_lshrrev_b32 v{t3}, 5, v1")
    A(f"v_bfe_u32 v{t0}, v1, 2, 2")
    A(f"v_lshl_add_u32 v{t0}, v{t3}, 2, v{t0}")
    A(f"v_lshlrev_b32 v{vW}, 12, v{t0}")
    A(f"v_bfe_u32 v{t0}, v1, 4, 1")
    A(f"v_lshl_add_u32 v{vW}, v{t0}, 6, v{vW}")
    A(f"v_and_b32 v{t0}, 3, v1")
    A(f"v_lshlrev_b32 v{t1}, 1, v{t3}")
    A(f"v_xor_b32 v{t0}, v{t0}, v{t1}")
    A(f"v_lshl_add_u32 v{vW}, v{t0}, 4, v{vW}")
    A("s_lshl_b32 s36, s25, 7")
    A("s_lshl_b32 s37, s24, 17")
    A("s_add_u32 s36, s36, s37")
    A(f"v_add_u32 v{vW}, s36, v{vW}")
    A(f"v_lshrrev_b32 v{t0}, 4, v1")
    A(f"v_lshlrev_b32 v{vWrc}, 9, v{t0}")
    A(f"v_and_b32 v{t0}, 1, v{t0}")
    A("s_and_b32 s36, s24, 1")
    A(f"v_xor_b32 v{t0}, s36, v{t0}")
    A(f"v_lshl_add_u32 v{vWrc}, v{t0}, 5, v{vWrc}")
    A(f"v_bfe_u32 v{t0}, v1, 2, 2")
    A(f"v_lshl_add_u32 v{vWrc}, v{t0}, 6, v{vWrc}")
    A(f"v_and_b32 v{t0}, 3, v1")
    A(f"v_lshl_add_u32 v{vWrc}, v{t0}, 3, v{vWrc}")
    A("s_lshr_b32 s36, s24, 1")
    A("s_lshl_b32 s36, s36, 8")
    A("s_add_u32 s36, s36, 20480")
    A(f"v_add_u32 v{vWrc}, s36, v{vWrc}")
    for it in range(3):
        A(f"v_add_u32 v{t0}, {64*it}, v1")
        A(f"v_mul_u32_u24 v{t1}, 205, v{t0}")
        A(f"v_lshrrev_b32 v{t1}, 11, v{t1}")
        A(f"v_mul_u32_u24 v{t2}, 10, v{t1}")
        A(f"v_sub_u32 v{t2}, v{t0}, v{t2}")
        A(f"v_mul_u32_u24 v{XO+it}, 1280, v{t1}")
        A(f"v_lshl_add_u32 v{XO+it}, v{t2}, 4, v{XO+it}")
    A(f"v_mov_b32 v{t0}, 0x40000000")
    A("v_cmp_gt_u32 vcc, 32, v1")
    A(f"v_and_b32 v{vB2}, 15, v1")
    A(f"v_lshlrev_b32 v{vB2}, 1, v{vB2}")
    A(f"v_cndmask_b32 v{XO+2}, v{t0}, v{XO+2}, vcc")
    A("s_lshl_b32 s27, s25, 6")
    A("s_lshl_b32 s36, s24, 4")
    A("s_add_u32 s27, s27, s36")
    A("s_mul_i32 s28, s27, 1280")
    A("s_mul_i32 s36, s26, 160")
    A("s_add_u32 s28, s28, s36")
    A("s_lshl_b32 s27, s27, 1")
    A("s_waitcnt lgkmcnt(0)")
    A(f"s_add_u32 s44, s8, {X2BUF}")
    A("s_addc_u32 s45, s9, 0")
    A("s_cmp_eq_u32 s3, 0")
    A("s_cselect_b32 s10, s44, s10")
    A("s_cselect_b32 s11, s45, s11")
    srd_off(A, 12, 8, UBUF, D*F*2)
    srd(A, 16, 4, F*S*2)
    srd_off(A, 20, 8, X1BUF, XBYTES)
    srd(A, 40, 6, S*2)
    srd(A, 44, 10, XBYTES)
    A(f"s_mul_i32 s30, s26, {5*48*1024}")
    A("s_lshl_b32 s36, s24, 10")
    A("s_add_u32 s30, s30, s36")
    A("s_mov_b32 s31, 0")
    A("s_mov_b32 s32, 0")
    A("s_mul_i32 s38, s24, 5120")
    A("s_lshl_b32 s39, s24, 12")
    A("s_add_u32 s39, s39, 20480")
    def dma():
        A("s_add_u32 s37, s32, s38")
        for dt in range(5):
            A(f"s_add_u32 m0, s37, {dt*1024}")
            A(f"s_add_u32 s36, s30, {dt*48*1024}")
            A(f"buffer_load_dwordx4 v{vL16}, s[12:15], s36 offen lds")
        A("s_add_u32 s37, s32, s39")
        for e in range(4):
            A(f"s_add_u32 m0, s37, {e*1024}")
            A(f"s_add_u32 s36, s31, {e*8*4096}")
            A(f"buffer_load_dwordx4 v{vW}, s[16:19], s36 offen lds")
        A("s_add_u32 s30, s30, 4096")
        A(f"s_add_u32 s31, s31, {128*4096}")
        A(f"s_add_u32 s32, s32, {SLOT2}")
        A(f"s_cmp_eq_u32 s32, {NS2*SLOT2}")
        A("s_cselect_b32 s32, 0, s32")
    A(f"buffer_load_ushort v{vB2}, v{vB2}, s[40:43], s27 offen")
    for it in range(3):
        A(f"buffer_load_dwordx4 {vr(RES+4*it,4)}, v{XO+it}, s[20:23], s28 offen")
    for i in range(NS2):
        dma()
    for r in range(20):
        A(f"v_mov_b32 v{ACC+r}, 0")
    def reads(t, buf):
        for dt in range(5):
            A(f"ds_read_b128 {vr(FB[buf]+4*dt,4)}, v{vUr} offset:{t*5120+dt*1024}")
        for j in range(2):
            A(f"ds_read_b64_tr_b16 {vr(FB[buf]+20+2*j,2)}, v{vWr} offset:{t*4096+j*2048}")
    def mfmas(buf):
        for dt in range(5):
            A(f"v_mfma_f32_16x16x32_bf16 {vr(ACC+4*dt,4)}, {vr(FB[buf]+4*dt,4)}, {vr(FB[buf]+20,4)}, {vr(ACC+4*dt,4)}")
    A("s_mov_b32 s33, 0")
    A("s_mov_b32 s29, 0")
    A(f"v_mov_b32 v{vUr}, v{vL16}")
    A(f"v_mov_b32 v{vWr}, v{vWrc}")
    A(f"s_waitcnt vmcnt({9*(NS2-1)})")
    A("s_barrier")
    reads(0, 0)
    A("w2_loop:")
    for t in range(3):
        reads(t+1, (t+1) % 2)
        A("s_waitcnt lgkmcnt(7)")
        mfmas(t % 2)
    A(f"s_add_u32 s33, s33, {SLOT2}")
    A(f"s_cmp_eq_u32 s33, {NS2*SLOT2}")
    A("s_cselect_b32 s33, 0, s33")
    A(f"s_cmp_lt_u32 s29, {NST2-NS2}")
    A(f"s_cselect_b32 s14, {D*F*2}, 0")
    A(f"s_cselect_b32 s18, {F*S*2}, 0")
    A(f"v_add_u32 v{vUr}, s33, v{vL16}")
    A(f"v_add_u32 v{vWr}, s33, v{vWrc}")
    A(f"s_waitcnt vmcnt({9*(NS2-2)}) lgkmcnt(0)")
    A("s_barrier")
    reads(0, 0)
    mfmas(1)
    dma()
    A("s_add_u32 s29, s29, 1")
    A(f"s_cmp_lt_u32 s29, {NST2}")
    A("s_cbranch_scc1 w2_loop")
    A("s_waitcnt vmcnt(0) lgkmcnt(0)")
    A("s_barrier")
    A(f"s_mul_i32 s36, s24, {16*PITCH2}")
    A(f"v_and_b32 v{t0}, 15, v1")
    A(f"v_mul_u32_u24 v{t0}, {PITCH2}, v{t0}")
    A(f"v_lshrrev_b32 v{t1}, 4, v1")
    A(f"v_lshl_add_u32 v{t0}, v{t1}, 4, v{t0}")
    A(f"v_add_u32 v{t0}, s36, v{t0}")
    A(f"v_lshlrev_b32 v{vB2}, 16, v{vB2}")
    for r in range(20):
        A(f"v_add_f32 v{ACC+r}, v{ACC+r}, v{vB2}")
    for dt in range(5):
        A(f"ds_write_b128 v{t0}, {vr(ACC+4*dt,4)} offset:{dt*64}")
    Y = FB[0]
    for it in range(3):
        A(f"v_add_u32 v{t0}, {64*it}, v1")
        A(f"v_mul_u32_u24 v{t1}, 205, v{t0}")
        A(f"v_lshrrev_b32 v{t1}, 11, v{t1}")
        A(f"v_mul_u32_u24 v{t2}, 10, v{t1}")
        A(f"v_sub_u32 v{t2}, v{t0}, v{t2}")
        A(f"v_mul_u32_u24 v{t1}, {PITCH2}, v{t1}")
        A(f"v_lshl_add_u32 v{t1}, v{t2}, 5, v{t1}")
        A(f"v_add_u32 v{t1}, s36, v{t1}")
        if it == 0:
            A("s_waitcnt lgkmcnt(0)")
        A(f"ds_read_b128 {vr(Y+8*it,4)}, v{t1}")
        A(f"ds_read_b128 {vr(Y+8*it+4,4)}, v{t1} offset:16")
    A("s_mov_b32 s37, 0xffff0000")
    U = FB[1]
    OUT = FB[1]+8
    A("s_waitcnt lgkmcnt(0)")
    for it in range(3):
        for i in range(4):
            A(f"v_lshlrev_b32 v{U+2*i}, 16, v{RES+4*it+i}")
            A(f"v_and_b32 v{U+2*i+1}, s37, v{RES+4*it+i}")
        for i in range(8):
            A(f"v_add_f32 v{Y+8*it+i}, v{Y+8*it+i}, v{U+i}")
        for i in range(4):
            A(f"v_cvt_pk_bf16_f32 v{OUT+4*it+i}, v{Y+8*it+2*i}, v{Y+8*it+2*i+1}")
        A(f"buffer_store_dwordx4 {vr(OUT+4*it,4)}, v{XO+it}, s[44:47], s28 offen")
    A("w2_exit:")
    A("s_endpgm")
    return [("w2a_kernel", NV), ("w2b_kernel", NV)]
assert all((c*205)>>11 == c//10 for c in range(192))
```

```python
from common import *

WIMG = 81920
PITCH = 272
LDS_WO = WIMG + 4*32*PITCH

def inblock(A, dst, t):
    A(f"v_and_b32 v{dst}, 3, v1")
    A(f"v_lshlrev_b32 v{dst}, 3, v{dst}")
    A(f"v_bfe_u32 v{t}, v1, 4, 1")
    A(f"v_lshl_add_u32 v{dst}, v{t}, 5, v{dst}")
    A(f"v_bfe_u32 v{t}, v1, 2, 2")
    A(f"v_lshl_add_u32 v{dst}, v{t}, 6, v{dst}")

def dmarow(A, dst, t, pitch):
    A(f"v_bfe_u32 v{t}, v1, 2, 2")
    A(f"v_lshrrev_b32 v{dst}, 5, v1")
    A(f"v_lshl_add_u32 v{t}, v{dst}, 2, v{t}")
    A(f"v_mul_u32_u24 v{dst}, {pitch}, v{t}")
    A(f"v_bfe_u32 v{t}, v1, 4, 1")
    A(f"v_lshl_add_u32 v{dst}, v{t}, 6, v{dst}")
    A(f"v_and_b32 v{t}, 3, v1")
    A(f"v_lshl_add_u32 v{dst}, v{t}, 4, v{dst}")

def gen_wo(A):
    entry(A, "wo1_kernel")
    A("s_mov_b32 s3, 0")
    A("s_branch wo_body")
    entry(A, "wo2_kernel")
    A("s_mov_b32 s3, 1")
    A("wo_body:")
    A("s_cmp_ge_u32 s2, 160")
    A("s_cbranch_scc1 wo_exit")
    A("s_load_dwordx2 s[4:5], s[0:1], 0")
    A("s_load_dwordx2 s[6:7], s[0:1], 16")
    A("s_load_dwordx2 s[8:9], s[0:1], 80")
    vL16, vOB, vW, vWa0, vWa1, vWb0, vWb1, vX = 2, 3, 4, 5, 6, 7, 8, 9
    t0, t1, t2, t3 = 10, 11, 12, 13
    ACC = 16
    WF = 48
    RES = 72
    OF = 88
    NV = 248
    A("v_lshrrev_b32 v2, 6, v0")
    A("v_and_b32 v1, 63, v0")
    A("s_and_b32 s34, s2, 7")
    A("v_readfirstlane_b32 s24, v2")
    A("s_lshr_b32 s35, s2, 3")
    A("s_lshl_b32 s25, s34, 1")
    A("s_and_b32 s36, s35, 1")
    A("s_add_u32 s25, s25, s36")
    A("s_lshr_b32 s26, s35, 1")
    A(f"v_lshlrev_b32 v{vL16}, 4, v1")
    A(f"v_lshrrev_b32 v{t3}, 5, v1")
    A(f"v_and_b32 v{t2}, 31, v1")
    A(f"v_mul_u32_u24 v{vOB}, {2*81920}, v{t3}")
    A(f"v_lshl_add_u32 v{vOB}, v{t2}, 3, v{vOB}")
    dmarow(A, vW, t0, 1280)
    A("s_lshl_b32 s36, s26, 7")
    A(f"s_mul_i32 s37, s24, {8*1280}")
    A("s_add_u32 s36, s36, s37")
    A(f"v_add_u32 v{vW}, s36, v{vW}")
    inblock(A, t1, t0)
    A(f"v_lshl_add_u32 v{vWa0}, v{t3}, 9, v{t1}")
    A(f"v_add_u32 v{vWa1}, 40960, v{vWa0}")
    A(f"v_mul_u32_u24 v{vWb0}, 5120, v{t3}")
    A(f"v_add_u32 v{vWb0}, v{vWb0}, v{t1}")
    A(f"v_add_u32 v{vWb1}, 40960, v{vWb0}")
    A("s_lshl_b32 s27, s25, 2")
    A("s_add_u32 s27, s27, s24")
    A(f"v_lshrrev_b32 v{t0}, 3, v1")
    A(f"v_mul_u32_u24 v{vX}, 1280, v{t0}")
    A(f"v_and_b32 v{t0}, 7, v1")
    A(f"v_lshl_add_u32 v{vX}, v{t0}, 4, v{vX}")
    A(f"s_mul_i32 s28, s27, {32*1280}")
    A("s_lshl_b32 s36, s26, 7")
    A("s_add_u32 s28, s28, s36")
    A("s_mul_i32 s29, s27, 1280")
    A(f"s_add_u32 s29, s29, {OBUF}")
    A("s_lshl_b32 s30, s24, 10")
    A("s_waitcnt lgkmcnt(0)")
    A(f"s_add_u32 s10, s8, {X2BUF}")
    A("s_addc_u32 s11, s9, 0")
    A("s_cmp_eq_u32 s3, 0")
    A("s_cselect_b32 s4, s4, s10")
    A("s_cselect_b32 s5, s5, s11")
    srd(A, 12, 4, XBYTES)
    srd(A, 16, 6, D*D*2)
    srd(A, 20, 8, WS_USED)
    steps = []
    for st in range(4):
        for hh in range(8):
            steps.append(('A', st*8+hh))
        for ii in range(2):
            steps.append(('B', st*2+ii))
    def issue(st):
        for jj in range(5):
            j = st*5+jj
            A(f"s_add_u32 m0, s30, {j*4096}")
            A(f"s_mov_b32 s36, {j*32*1280}")
            A(f"buffer_load_dwordx4 v{vW}, s[16:19], s36 offen lds")
        for k in range(st*10, st*10+10):
            kind, i = steps[k]
            r = OF+4*k
            if kind == 'A':
                A(f"s_add_u32 s36, s29, {i*81920}")
                A(f"buffer_load_dwordx4 {vr(r,4)}, v{vL16}, s[20:23], s36 offen")
            else:
                for e in range(2):
                    A(f"s_add_u32 s36, s29, {(4*i+e)*81920}")
                    A(f"buffer_load_dwordx2 {vr(r+2*e,2)}, v{vOB}, s[20:23], s36 offen offset:1024")
    for st in range(3):
        issue(st)
    for r in range(32):
        A(f"v_mov_b32 v{ACC+r}, 0")
    def reads(k):
        kind, i = steps[k]
        b = WF + 8*(k % 3)
        for ct in range(2):
            for j in range(2):
                if kind == 'A':
                    off, base = (5*i+2*j)*512 + ct*256, (vWa0, vWa1)
                else:
                    off, base = (20*i+5*j+4)*512 + ct*256, (vWb0, vWb1)
                hi = off >= 40960
                A(f"ds_read_b64_tr_b16 {vr(b+4*ct+2*j,2)}, v{base[hi]} offset:{off-40960*hi}")
    LA = 2
    for k in range(-LA, 40):
        kr = k + LA
        if kr < 40:
            if kr % 10 == 0:
                st = kr // 10
                n = {0: 34, 1: 17+17+4, 2: 17+4, 3: 4}[st]
                A(f"s_waitcnt vmcnt({n})")
                A("s_barrier")
                if st == 0:
                    issue(3)
                    for it in range(4):
                        A(f"s_add_u32 s36, s28, {it*8*1280}")
                        A(f"buffer_load_dwordx4 {vr(RES+4*it,4)}, v{vX}, s[12:15], s36 offen")
            reads(kr)
        if k >= 0:
            later = min(39, k+LA) - k
            A(f"s_waitcnt lgkmcnt({4*later})")
            b = WF + 8*(k % 3)
            for ct in range(2):
                A(f"v_mfma_f32_32x32x16_bf16 {vr(ACC+16*ct,16)}, {vr(b+4*ct,4)}, {vr(OF+4*k,4)}, {vr(ACC+16*ct,16)}")
    A(f"s_mul_i32 s36, s24, {32*PITCH}")
    A(f"s_add_u32 s36, s36, {WIMG}")
    A(f"v_mul_u32_u24 v{t0}, {PITCH}, v{t2}")
    A(f"v_lshl_add_u32 v{t0}, v{t3}, 4, v{t0}")
    A(f"v_add_u32 v{t0}, s36, v{t0}")
    A(f"v_lshrrev_b32 v{t1}, 3, v1")
    A(f"v_mul_u32_u24 v{t1}, {PITCH}, v{t1}")
    A(f"v_and_b32 v{t2}, 7, v1")
    A(f"v_lshl_add_u32 v{t1}, v{t2}, 5, v{t1}")
    A(f"v_add_u32 v{t1}, s36, v{t1}")
    A("s_nop 7")
    for ct in range(2):
        for g in range(4):
            A(f"ds_write_b128 v{t0}, {vr(ACC+16*ct+4*g,4)} offset:{ct*128+g*32}")
    A("s_waitcnt lgkmcnt(0)")
    Y = OF
    for it in range(4):
        for e in range(2):
            A(f"ds_read_b128 {vr(Y+8*it+4*e,4)}, v{t1} offset:{it*8*PITCH+e*16}")
    A(f"s_add_u32 s28, s28, {X1BUF}")
    A("s_mov_b32 s37, 0xffff0000")
    U = OF+32
    SUM, SQ = OF+48, OF+52
    OUT = OF+64
    A("s_waitcnt vmcnt(0) lgkmcnt(0)")
    for it in range(4):
        for i in range(4):
            A(f"v_lshlrev_b32 v{U+2*i}, 16, v{RES+4*it+i}")
            A(f"v_and_b32 v{U+2*i+1}, s37, v{RES+4*it+i}")
        for i in range(8):
            A(f"v_add_f32 v{Y+8*it+i}, v{Y+8*it+i}, v{U+i}")
        for i in range(4):
            A(f"v_cvt_pk_bf16_f32 v{OUT+4*it+i}, v{Y+8*it+2*i}, v{Y+8*it+2*i+1}")
        A(f"s_add_u32 s36, s28, {it*8*1280}")
        A(f"buffer_store_dwordx4 {vr(OUT+4*it,4)}, v{vX}, s[20:23], s36 offen")
    A(f"v_mov_b32 v{t3}, 0x3f803f80")
    for it in range(4):
        A(f"v_mov_b32 v{SUM+it}, 0")
        A(f"v_mov_b32 v{SQ+it}, 0")
    for i in range(4):
        for it in range(4):
            A(f"v_dot2c_f32_bf16 v{SUM+it}, v{OUT+4*it+i}, v{t3}")
            A(f"v_dot2c_f32_bf16 v{SQ+it}, v{OUT+4*it+i}, v{OUT+4*it+i}")
    A("s_nop 3")
    for dpp in ("quad_perm:[1,0,3,2]", "quad_perm:[2,3,0,1]", "row_half_mirror"):
        for r in range(8):
            A(f"v_add_f32_dpp v{SUM+r}, v{SUM+r}, v{SUM+r} {dpp} row_mask:0xf bank_mask:0xf")
    A(f"v_and_b32 v{t0}, 1, v1")
    A(f"v_cmp_eq_u32 vcc, 1, v{t0}")
    A(f"v_lshrrev_b32 v{t1}, 3, v1")
    A(f"v_lshlrev_b32 v{t1}, 3, v{t1}")
    A(f"v_lshl_add_u32 v{t1}, v{t0}, 2, v{t1}")
    for it in range(4):
        A(f"v_cndmask_b32 v{SUM+it}, v{SUM+it}, v{SQ+it}, vcc")
    A("s_lshl_b32 s36, s27, 8")
    A(f"s_add_u32 s36, s36, {STATS}")
    A("s_mov_b32 s38, 0x03030303")
    A("s_mov_b32 s39, 0x03030303")
    A("s_mov_b64 exec, s[38:39]")
    for it in range(4):
        A(f"buffer_atomic_add_f32 v{SUM+it}, v{t1}, s[20:23], s36 offen offset:{it*64}")
    A("wo_exit:")
    A("s_endpgm")
    return [("wo1_kernel", NV), ("wo2_kernel", NV)]
```

```python
import sys, os
sys.path.insert(0, os.path.dirname(os.path.abspath(__file__)))
from common import *
import k_qkv, k_attn, k_wo, k_w1, k_w2
NAME = "interleave_layers__softmax_full_mha__mixer_token_mlp__prompt"
def build():
    ref = open(f"cdna_kernels/{NAME}.s.ref").read().splitlines()
    head = [l for l in ref if l.startswith(';') and '@launch' not in l and 'Override launch' not in l and 'grid=ceil' not in l]
    L = [("qkv1_kernel", 256, 512, k_qkv.LDS_QKV), ("attn_kernel", 256, 512, k_attn.LDS_ATTN),
         ("wo1_kernel", 160, 256, k_wo.LDS_WO), ("w1_kernel", 240, 512, k_w1.LDS_W1), ("w2a_kernel", 256, 256, k_w2.LDS_W2),
         ("qkv2_kernel", 256, 512, k_qkv.LDS_QKV), ("attn_kernel", 256, 512, k_attn.LDS_ATTN),
         ("wo2_kernel", 160, 256, k_wo.LDS_WO), ("w1_kernel", 240, 512, k_w1.LDS_W1), ("w2b_kernel", 256, 256, k_w2.LDS_W2)]
    for k, g, b, lds in L:
        head.append(f"; @launch kernel={k} grid=({g},1,1) block=({b},1,1) lds={lds}")
    A = Asm()
    A('.amdgcn_target "amdgcn-amd-amdhsa--gfx950"')
    A(".text")
    ks = []
    for g in (k_qkv.gen_qkv, k_attn.gen_attn, k_wo.gen_wo, k_w1.gen_w1, k_w2.gen_w2):
        ks += g(A)
    out = "\n".join(head) + "\n" + A.text() + '.section .rodata,"a"\n'
    for n, nv in ks:
        out += descriptor(n, nv, 64)
    return out
if __name__ == "__main__":
    p = sys.argv[1] if len(sys.argv) > 1 else f"cdna_kernels/{NAME}.s"
    open(p, "w").write(build())
```
